```python
import torch

def _softmax(x, axis=-1):
    return torch.softmax(x, dim=axis)
def _gelu(x):
    return torch.nn.functional.gelu(x, approximate="tanh")
def _silu(x):
    return torch.nn.functional.silu(x)
def _sigmoid(x):
    return torch.sigmoid(x)
def _layernorm(x, axis=-1, eps=1e-5):
    m = x.mean(dim=axis, keepdim=True)
    v = x.var(dim=axis, keepdim=True, unbiased=False)
    return (x - m) / torch.sqrt(v + eps)
def _scatter_add(tgt, idx, src, axis=0):
    return tgt.clone().index_add_(axis, idx, src)
def _segment_sum(src, seg, n):
    out = torch.zeros((n,) + src.shape[1:], dtype=src.dtype)
    return out.index_add_(0, seg, src)
def _pad(x, pw):
    flat = tuple(v for pair in reversed(pw) for v in pair)
    return torch.nn.functional.pad(x, flat)

kernel_name = 'concat_heads__mha_block_cached__gqa_block_cached__near_ridge'

def setup_inputs():

    _w = (lambda a: (lambda t: t.to(torch.bfloat16) if t.is_floating_point() else t)(torch.as_tensor(a)))
    def _A_setup():
        B, Sq, D = 32, 48, 512
        H, Sk, Dh = 32, 48, 128
        return {
            "x": _w((lambda *s: torch.randn(*s, dtype=torch.bfloat16) * 0.8)(B, Sq, D)),
            "k_cache": _w((lambda *s: torch.randn(*s, dtype=torch.bfloat16) * 0.8)(B, H, Sk, Dh)),
            "v_cache": _w((lambda *s: torch.randn(*s, dtype=torch.bfloat16) * 0.05)(B, H, Sk, Dh)),
            "wq": _w((lambda *s: torch.randn(*s, dtype=torch.bfloat16) * 0.8)(D, H * Dh) * (D ** -0.5)),
            "wo": _w((lambda *s: torch.randn(*s, dtype=torch.bfloat16) * 0.05)(H * Dh, D) * ((H * Dh) ** -0.5)),
        }
    _A_in = _A_setup()

    def _B_setup():
        B, Sq, D = 32, 48, 512
        Hq, Hkv, Sk, Dh = 32, 32, 48, 128
        assert Hq % Hkv == 0, (Hq, Hkv)
        return {
            "x": _w((lambda *s: torch.randn(*s, dtype=torch.bfloat16) * 0.8)(B, Sq, D)),
            "k_cache": _w((lambda *s: torch.randn(*s, dtype=torch.bfloat16) * 0.8)(B, Hkv, Sk, Dh)),
            "v_cache": _w((lambda *s: torch.randn(*s, dtype=torch.bfloat16) * 0.05)(B, Hkv, Sk, Dh)),
            "wq": _w((lambda *s: torch.randn(*s, dtype=torch.bfloat16) * 0.8)(D, Hq * Dh) * (D ** -0.5)),
            "wo": _w((lambda *s: torch.randn(*s, dtype=torch.bfloat16) * 0.05)(Hq * Dh, D) * ((Hq * Dh) ** -0.5)),
        }
    _B_in = _B_setup()

    return {
        "A_x": _A_in["x"],
        "A_k_cache": _A_in["k_cache"],
        "A_v_cache": _A_in["v_cache"],
        "A_wq": _A_in["wq"],
        "A_wo": _A_in["wo"],
        "B_x": _B_in["x"],
        "B_k_cache": _B_in["k_cache"],
        "B_v_cache": _B_in["v_cache"],
        "B_wq": _B_in["wq"],
        "B_wo": _B_in["wo"],
    }

def reference(A_x, A_k_cache, A_v_cache, A_wq, A_wo, B_x, B_k_cache, B_v_cache, B_wq, B_wo):
    def _A_ref(x, k_cache, v_cache, wq, wo):
        B, Sq, D = x.shape
        H, Dh = 32, 128
        q = (lambda x, *d: x.permute(*d))((x @ wq).reshape(B, Sq, H, Dh), 0, 2, 1, 3)
        scores = torch.einsum("bhqd,bhkd->bhqk", q, k_cache) * (Dh ** -0.5)
        p = _softmax(scores, axis=-1)
        o = torch.einsum("bhqk,bhkd->bhqd", p, v_cache)
        return (lambda x, *d: x.permute(*d))(o, 0, 2, 1, 3).reshape(B, Sq, H * Dh) @ wo

    def _B_ref(x, k_cache, v_cache, wq, wo):
        B, Sq, D = x.shape
        Hq, Dh = 32, 128
        Hkv = k_cache.shape[1]
        rep = Hq // Hkv
        q = (lambda x, *d: x.permute(*d))((x @ wq).reshape(B, Sq, Hq, Dh), 0, 2, 1, 3)
        k = (lambda x, n, axis: torch.repeat_interleave(x, n, dim=axis))(k_cache, rep, axis=1)
        v = (lambda x, n, axis: torch.repeat_interleave(x, n, dim=axis))(v_cache, rep, axis=1)
        scores = torch.einsum("bhqd,bhkd->bhqk", q, k) * (Dh ** -0.5)
        p = _softmax(scores, axis=-1)
        o = torch.einsum("bhqk,bhkd->bhqd", p, v)
        return (lambda x, *d: x.permute(*d))(o, 0, 2, 1, 3).reshape(B, Sq, Hq * Dh) @ wo

    a = _A_ref(A_x, A_k_cache, A_v_cache, A_wq, A_wo)
    b = _B_ref(B_x, B_k_cache, B_v_cache, B_wq, B_wo)
    return torch.concatenate([a, b], axis=-1)
```

```python
import re
REG = re.compile(r'\b([vs])(\d+)\b|\b([vs])\[(\d+):(\d+)\]')
def regs(tok):
    out=set()
    for m in REG.finditer(tok):
        if m.group(1): out.add((m.group(1),int(m.group(2))))
        else:
            for i in range(int(m.group(4)),int(m.group(5))+1): out.add((m.group(3),i))
    if re.search(r'\bvcc\b',tok): out|={('s',106),('s',107)}
    if re.search(r'\bm0\b',tok): out.add(('s',124))
    if re.search(r'\bexec\b',tok): out|={('s',126),('s',127)}
    return out
TRANS=('v_exp_f32','v_rcp_f32','v_log_f32','v_rsq_f32','v_sqrt_f32')
class I:
    def __init__(s,text):
        s.text=text; t=text.strip(); s.op=t.split()[0] if t else ''
        rest=t[len(s.op):]; ops=[o.strip() for o in rest.split(',')]
        s.w=set(); s.r=set(); s.c=set(); op=s.op
        s.kind='other'
        if t.endswith(':') or op.startswith(';') or op.startswith('.'): s.kind='label'; return
        if op.startswith('v_mfma'):
            s.kind='mfma'; s.w=regs(ops[0]); s.ab=regs(ops[1])|regs(ops[2]); s.c=regs(ops[3]); s.r=s.ab|s.c
        elif op.startswith('v_permlane'):
            s.kind='valu'; s.w=regs(ops[0])|regs(ops[1]); s.r=set(s.w)
        elif op.startswith('v_'):
            s.kind='valu'; s.w=regs(ops[0]); s.r=set().union(*[regs(o) for o in ops[1:]])
            if op.startswith('v_fmac'): s.r|=s.w
        elif op.startswith('ds_read'):
            s.kind='ds'; s.w=regs(ops[0]); s.r=regs(ops[1])
        elif op.startswith('ds_write'):
            s.kind='ds'; s.r=regs(rest)
        elif op.startswith('buffer_load'):
            s.kind='vm'
            if ' lds' in t: s.r=regs(rest)|{('s',124)}; s.lds=True
            else: s.w=regs(ops[0]); s.r=set().union(*[regs(o) for o in ops[1:]])
        elif op.startswith('buffer_store'):
            s.kind='vm'; s.r=regs(rest); s.sd=regs(ops[0]) if ('x4' in op or 'x3' in op) else set()
        elif op.startswith('buffer_atomic'):
            s.kind='vm'; s.r=regs(rest)
            if ' sc0' in t: s.w=regs(ops[0])
        elif op.startswith('s_'):
            s.kind='salu'
            if op.startswith(('s_cmp','s_waitcnt','s_barrier','s_nop','s_cbranch','s_branch','s_endpgm','s_setprio','s_sleep')):
                s.r=regs(rest)
            else:
                s.w=regs(ops[0]); s.r=set().union(*[regs(o) for o in ops[1:]]) if len(ops)>1 else set()
                if 'saveexec' in op: s.w|={('s',126),('s',127)}
    def states(s):
        if s.kind=='label': return 0
        if s.op=='s_nop': return int(s.text.split()[1])+1
        return 1
def need(p,c):
    n=0
    V=lambda x:{r for r in x if r[0]=='v'}
    S=lambda x:{r for r in x if r[0]=='s'}
    if p.kind=='valu':
        if c.kind=='mfma' and V(p.w)&c.r: n=max(n,2)
        if c.kind=='mfma' and (('s',126) in p.w): n=max(n,4)
        if c.op.startswith('v_permlane') and V(p.w)&c.r: n=max(n,2)
        if c.op.startswith(('v_readfirstlane','v_readlane')) and V(p.w)&c.r: n=max(n,1)
        if p.op in TRANS and c.kind=='valu' and V(p.w)&c.r: n=max(n,1)
        if S(p.w):
            if c.kind=='vm' and S(p.w)&c.r: n=max(n,5)
            if c.kind=='valu' and S(p.w)&c.r: n=max(n,2)
            if c.kind=='salu' and S(p.w)&c.r: n=max(n,4)
    if p.kind=='mfma':
        if c.kind=='mfma':
            if p.w&c.ab: n=max(n,8)
            if p.w&c.c and not (p.w==c.c): n=max(n,6)
            if p.w&c.w and not (p.w==c.c): n=max(n,8)
        elif c.kind in('valu','vm','ds'):
            if p.w&(c.r|c.w): n=max(n,8)
            if c.kind=='valu' and p.c&c.w: n=max(n,3)
    if p.kind=='salu' and ('s',124) in p.w and getattr(c,'lds',False): n=max(n,1)
    if p.kind=='vm' and getattr(p,'sd',None) and c.kind in('valu','ds','vm','mfma') and p.sd&c.w: n=max(n,2)
    return n
class Prog:
    def __init__(s): s.ins=[]; s.vm=[]; s.lg=[]
    def e(s,text,tag=None,count=True):
        for line in text.strip('\n').split('\n'):
            line=line.strip()
            if not line: continue
            c=I(line); d=0; nn=0
            for p in reversed(s.ins):
                if d>=8: break
                nn=max(nn,need(p,c)-d); d+=p.states()
            if nn>0: s.ins.append(I(f's_nop {nn-1}'))
            s.ins.append(c)
            if c.kind=='vm' and count: s.vm.append(tag)
            if c.kind=='ds': s.lg.append(tag)
    def _n(s,q,tags):
        idx=[i for i,t in enumerate(q) if t in tags]
        return None if not idx else len(q)-1-max(idx)
    def wait(s,vm=(),lg=(),vm0=False,lg0=False):
        a=0 if vm0 else s._n(s.vm,set(vm)); b=0 if lg0 else s._n(s.lg,set(lg)); t=''
        if a is not None:
            a=min(a,63); t+=f' vmcnt({a})'; s.vm=s.vm[len(s.vm)-a:] if a else []
        if b is not None:
            b=min(b,15); t+=f' lgkmcnt({b})'; s.lg=s.lg[len(s.lg)-b:] if b else []
        if t: s.e('s_waitcnt'+t)
    def text(s):
        return '\n'.join((i.text if i.kind=='label' else '  '+i.text) for i in s.ins)+'\n'
```

```python
import sys, math
sys.path.insert(0,'gen')
from asmlib import Prog
N="concat_heads__mha_block_cached__gqa_block_cached__near_ridge"
opt=dict(a.split('=') for a in sys.argv[2:])
STAMP=int(opt.get('stamp',0)); KVNT=' nt' if int(opt.get('kvnt',1)) else ''
SPIN=int(opt.get('spin',1<<17)); PRIO=int(opt.get('prio',0))
P=Prog(); e=P.e
def vr(b,n=4): return f'v[{b}:{b+n-1}]' if n>1 else f'v{b}'
SX,SK,SV,SWQ,SWO,SOUT,SWS,SDBG=24,28,32,36,40,44,48,52
sW,sHG,sBP,sBR,sGRP,sBI,sHI=56,57,58,59,60,61,62
sMW,sT0,sT1,sT2,sMXA,sMXB,sMO,sC,sPLO,sPHI,sCH,sHI16=63,64,65,66,67,68,69,70,71,72,73,74
sST=76
def srd(b): return f's[{b}:{b+3}]'
ACC,KR,VR,BF,AF=0,96,144,192,216
aW0,aW1,aX0,aX1,dW,dXa,dXb,vK0,vK2,vV0,vV2,dWo,aO0,aO1,aO2,vL16,vT0,vT1,vT2,vT3,vOut,vL8,vDbg,vOW=range(232,256)
WSLOT=33024; XBASE=4*WSLOT; XSLOT=12288; OBASE=65536
PART=0; CNT=32<<20
stamps=[]
def stamp(name):
    if STAMP:
        e(f's_memtime s[{sST+2*len(stamps)}:{sST+2*len(stamps)+1}]'); stamps.append(name)
e(f'''s_cmp_ge_u32 s2, 256
s_cbranch_scc1 Lend''')
stamp('start')
if STAMP: e('s_memrealtime s[98:99]')
e(f'''s_and_b32 {'s%d'%sT0}, s2, 7
s_lshr_b32 s{sBR}, s{sT0}, 2
s_mul_i32 s{sT1}, s{sBR}, 40
s_add_u32 s4, s0, s{sT1}
s_addc_u32 s5, s1, 0
s_load_dwordx2 s[{SX}:{SX+1}], s[4:5], 0
s_load_dwordx2 s[{SWQ}:{SWQ+1}], s[4:5], 24
s_load_dwordx2 s[{SK}:{SK+1}], s[4:5], 8
s_load_dwordx2 s[{SV}:{SV+1}], s[4:5], 16
s_load_dwordx2 s[{SWO}:{SWO+1}], s[4:5], 32
s_load_dwordx2 s[{SOUT}:{SOUT+1}], s[0:1], 80
s_load_dwordx2 s[{SDBG}:{SDBG+1}], s[0:1], 88
s_load_dwordx2 s[{SWS}:{SWS+1}], s[0:1], 96
v_lshrrev_b32 v1, 6, v0
v_and_b32 v0, 63, v0
v_readfirstlane_b32 s{sW}, v1
s_lshr_b32 s{sT1}, s2, 3
s_and_b32 s{sT0}, s{sT0}, 3
s_lshl_b32 s{sT0}, s{sT0}, 1
s_and_b32 s{sT2}, s{sT1}, 1
s_add_u32 s{sHG}, s{sT0}, s{sT2}
s_lshr_b32 s{sBP}, s{sT1}, 1
s_lshl_b32 s{sT0}, s{sBR}, 4
s_add_u32 s{sGRP}, s{sT0}, s{sBP}
s_lshr_b32 s{sBI}, s{sW}, 2
s_and_b32 s{sHI}, s{sW}, 3''')
for b,sz in ((SX,1572864),(SK,12582912),(SV,12582912),(SWQ,4194304),(SWO,4194304),(SOUT,3145728),(SWS,268435456),(SDBG,256)):
    e(f's_mov_b32 s{b+2}, {sz}\ns_mov_b32 s{b+3}, 0x00020000')
e(f'''v_lshrrev_b32 v1, 4, v0
v_and_b32 v2, 15, v0
v_lshrrev_b32 v3, 2, v2
v_and_b32 v4, 3, v0
v_lshlrev_b32 v{vL16}, 4, v0
v_lshlrev_b32 v{vL8}, 3, v0
s_and_b32 s{sT0}, s{sW}, 3
s_lshr_b32 s{sT1}, s{sW}, 2
s_lshl_b32 s{sT1}, s{sT1}, 3
s_add_u32 s{sT0}, s{sT0}, s{sT1}
s_lshl_b32 s{sT0}, s{sT0}, 13
s_lshl_b32 s{sT1}, s{sHG}, 10
s_add_u32 s{sT0}, s{sT0}, s{sT1}
v_add_u32 v{dW}, s{sT0}, v{vL16}
s_mul_i32 s{sMW}, s{sW}, 4128
v_lshrrev_b32 v5, 3, v0
v_and_b32 v6, 7, v0
s_lshl_b32 s{sT0}, s{sW}, 3
v_add_u32 v7, s{sT0}, v5
v_bfe_u32 v8, v7, 1, 3
v_xor_b32 v8, v8, v6
v_lshlrev_b32 v8, 4, v8
s_mul_i32 s{sT1}, s{sBP}, 98304
v_lshl_add_u32 v8, v7, 10, v8
v_add_u32 v{dXa}, s{sT1}, v8
s_lshl_b32 s{sT0}, s{sW}, 2
s_add_u32 s{sT0}, s{sT0}, 64
v_add_u32 v7, s{sT0}, v5
v_bfe_u32 v8, v7, 1, 3
v_xor_b32 v8, v8, v6
v_lshlrev_b32 v8, 4, v8
v_lshl_add_u32 v8, v7, 10, v8
v_add_u32 v{dXb}, s{sT1}, v8
s_lshl_b32 s{sMXA}, s{sW}, 10
s_add_u32 s{sMXA}, s{sMXA}, {XBASE}
s_lshl_b32 s{sMXB}, s{sW}, 9
s_add_u32 s{sMXB}, s{sMXB}, {XBASE+8192}
s_waitcnt lgkmcnt(0)''')
def dmaW(s):
    for idx in range(4):
        e(f'''s_add_u32 m0, s{sMW}, {(s%4)*WSLOT+idx*1024}
s_mov_b32 s{sT0}, {(s*32+4*(idx&1)+16*(idx>>1))*8192}
buffer_load_dwordx4 v{dW}, {srd(SWQ)}, s{sT0} offen lds''',tag=('W',s))
def dmaX(p):
    e(f'''s_add_u32 m0, s{sMXA}, {(p%2)*XSLOT}
s_mov_b32 s{sT0}, {p*128}
buffer_load_dwordx4 v{dXa}, {srd(SX)}, s{sT0} offen lds
s_mov_b32 exec_hi, 0
s_add_u32 m0, s{sMXB}, {(p%2)*XSLOT}
s_nop 0
buffer_load_dwordx4 v{dXb}, {srd(SX)}, s{sT0} offen lds
s_mov_b64 exec, -1''',tag=('X',p))
dmaX(0); dmaW(0)
e(f'''s_lshl_b32 s{sT0}, s{sGRP}, 2
v_mov_b32 v{vDbg}, s{sT0}
v_mov_b32 v{vT3}, 1
s_cmp_lg_u32 s{sW}, 0
s_cbranch_scc1 Lnoel
s_mov_b64 exec, 1''')
e(f'buffer_atomic_add v{vT3}, v{vDbg}, {srd(SDBG)}, 0 offen sc0 sc1',count=False)
e('s_mov_b64 exec, -1\nLnoel:')
dmaW(1); dmaX(1); dmaW(2)
e(f'''v_and_b32 v5, 1, v1
v_lshl_add_u32 v6, v5, 2, v3
v_mul_u32_u24 v6, 4128, v6
v_lshrrev_b32 v7, 1, v1
v_lshl_add_u32 v6, v7, 11, v6
v_lshl_add_u32 v6, v4, 3, v6
s_lshl_b32 s{sT0}, s{sHI}, 8
v_add_u32 v{aW0}, s{sT0}, v6
v_add_u32 v{aW1}, {2*WSLOT}, v{aW0}
v_lshrrev_b32 v6, 1, v2
v_xor_b32 v6, v6, v1
v_lshlrev_b32 v6, 4, v6
v_lshl_add_u32 v6, v2, 7, v6
s_mul_i32 s{sT0}, s{sBI}, 6144
s_add_u32 s{sT0}, s{sT0}, {XBASE}
v_add_u32 v{aX0}, s{sT0}, v6
v_xor_b32 v{aX1}, 64, v{aX0}
s_lshl_b32 s{sT0}, s{sBP}, 1
s_add_u32 s{sT0}, s{sT0}, s{sBI}
s_lshl_b32 s{sT0}, s{sT0}, 5
s_lshl_b32 s{sT1}, s{sHG}, 2
s_add_u32 s{sT0}, s{sT0}, s{sT1}
s_add_u32 s{sT0}, s{sT0}, s{sHI}
s_mul_i32 s{sT0}, s{sT0}, 12288
v_lshl_add_u32 v6, v3, 3, v4
v_lshlrev_b32 v6, 8, v6
v_lshl_add_u32 v6, v1, 3, v6
v_add_u32 v{vK0}, s{sT0}, v6
v_lshlrev_b32 v6, 8, v2
v_lshl_add_u32 v6, v1, 3, v6
v_add_u32 v6, 8192, v6
v_add_u32 v{vK2}, s{sT0}, v6
v_lshlrev_b32 v6, 4, v2
v_lshl_add_u32 v7, v1, 11, v6
v_add_u32 v{vV0}, s{sT0}, v7
v_lshl_add_u32 v7, v1, 10, v6
v_add_u32 v7, 8192, v7
v_add_u32 v{vV2}, s{sT0}, v7
v_lshrrev_b32 v6, 3, v0
v_bfe_u32 v7, v6, 1, 1
s_and_b32 s{sT0}, s{sW}, 1
s_lshl_b32 s{sT0}, s{sT0}, 1
v_add_u32 v7, s{sT0}, v7
v_lshlrev_b32 v7, 1, v7
v_and_b32 v8, 7, v0
v_xor_b32 v7, v7, v8
v_lshlrev_b32 v7, 4, v7
v_lshl_add_u32 v7, v6, 10, v7
s_lshl_b32 s{sT0}, s{sHG}, 19
s_lshl_b32 s{sT1}, s{sW}, 15
s_add_u32 s{sT0}, s{sT0}, s{sT1}
v_add_u32 v{dWo}, s{sT0}, v7
s_lshl_b32 s{sMO}, s{sW}, 12
v_lshrrev_b32 v6, 1, v3
v_lshl_add_u32 v6, v5, 1, v6
v_xor_b32 v6, s{sHI}, v6
v_lshlrev_b32 v6, 5, v6
v_lshl_add_u32 v6, v4, 3, v6
v_lshl_add_u32 v7, v1, 5, v3
v_lshl_add_u32 v{aO0}, v7, 7, v6
v_add_u32 v{aO1}, 0x10000, v{aO0}
v_add_u32 v{aO2}, 0x20000, v{aO0}
s_lshl_b32 s{sT0}, s{sHI}, 1
s_add_u32 s{sT0}, s{sT0}, s{sBI}
s_mul_i32 s{sT0}, s{sT0}, 12288
s_add_u32 s{sT0}, s{sT0}, {OBASE}
v_add_u32 v{vOW}, s{sT0}, v{vL16}
s_mul_i32 s{sT0}, s{sBP}, 96
s_mul_i32 s{sT1}, s{sBI}, 48
s_add_u32 s{sT0}, s{sT0}, s{sT1}
s_lshl_b32 s{sT0}, s{sT0}, 11
s_lshl_b32 s{sT1}, s{sBR}, 10
s_add_u32 s{sT0}, s{sT0}, s{sT1}
s_lshl_b32 s{sT1}, s{sHG}, 7
s_add_u32 s{sT0}, s{sT0}, s{sT1}
s_lshl_b32 s{sT1}, s{sHI}, 5
s_add_u32 s{sT0}, s{sT0}, s{sT1}
v_lshlrev_b32 v6, 11, v2
v_lshl_add_u32 v6, v1, 3, v6
v_add_u32 v{vOut}, s{sT0}, v6
s_mov_b32 s{sC}, 0x{__import__('struct').unpack('<I',__import__('struct').pack('<f',128**-0.5*math.log2(math.e)))[0]:08x}
s_mov_b32 s{sPLO}, 0x05040100
s_mov_b32 s{sPHI}, 0x07060302
s_mov_b32 s{sHI16}, 0xffff0000''')
if PRIO: e(f's_cmp_lt_u32 s{sW}, 4\ns_cbranch_scc1 Lnp\ns_setprio 1\nLnp:')
def dmaWo(s):
    c=s//2
    e(f'''s_add_u32 s{sCH}, s{sHG}, {1+c}
s_and_b32 s{sCH}, s{sCH}, 7
s_lshl_b32 s{sCH}, s{sCH}, 7''')
    for i in range(4):
        e(f'''s_add_u32 m0, s{sMO}, {(s%5)*32768+i*1024}
s_add_u32 s{sT0}, s{sCH}, {(s&1)*262144+i*8192}
buffer_load_dwordx4 v{dWo}, {srd(SWO)}, s{sT0} offen lds''',tag=('Wo',s))
kl=[(m,s,h) for m in range(3) for s in range(4) for h in range(2)]
def loadK(i):
    m,s,h=kl[i]; d=KR+(m*4+s)*4+2*h
    e(f'buffer_load_dwordx2 {vr(d,2)}, v{vK2 if m==2 else vK0}, {srd(SK)}, 0 offen offset:{(1024 if m==1 else 0)+s*64+h*32}{KVNT}',tag='K')
def loadV(i):
    e(f'buffer_load_dwordx4 {vr(VR+4*i)}, v{vV0 if i<8 else vV2}, {srd(SV)}, 0 offen offset:{(i%8)*256}{KVNT}',tag='V')
def rdA(F):
    s,t=divmod(F,8); b=AF+(F%4)*4; sl=s%4
    for h in range(2):
        e(f'ds_read_b64_tr_b16 {vr(b+2*h,2)}, v{aW0 if sl<2 else aW1} offset:{(sl&1)*WSLOT+h*1024+t*32}',tag=('A',F))
def rdB(s,u):
    e(f'ds_read_b128 {vr(BF+(s%2)*12+4*u)}, v{aX1 if s&1 else aX0} offset:{((s>>1)%2)*XSLOT+u*2048}',tag=('B',s))
P.wait(vm=[('W',0),('X',0)]); e('s_barrier'); stamp('first')
for u in range(3): rdB(0,u)
for F in range(3): rdA(F)
for s in range(16):
    for t in range(8):
        F=8*s+t
        if t==4:
            if s<15: P.wait(vm=[('W',s+1),('X',(s+1)//2)])
            e('s_barrier')
            if s==0:
                e(f'''s_cmp_lg_u32 s{sW}, 0
s_cbranch_scc1 Lnz
v_readfirstlane_b32 s{sT0}, v{vT3}
s_cmp_lg_u32 s{sT0}, 0
s_cbranch_scc1 Lnz
s_lshl_b32 s{sT0}, s{sGRP}, 10
s_add_u32 s{sT0}, s{sT0}, {CNT}
v_mov_b32 v{vT0}, 0
v_mov_b32 v{vT1}, 0
v_mov_b32 v{vT2}, 0
v_mov_b32 v{vT3}, 0''')
                e(f'buffer_store_dwordx4 {vr(vT0)}, v{vL16}, {srd(SWS)}, s{sT0} offen sc1',count=False)
                e(f's_waitcnt vmcnt(0)\nv_mov_b32 v{vT3}, 0x100\ns_mov_b64 exec, 1')
                e(f'buffer_atomic_or v{vT3}, v{vDbg}, {srd(SDBG)}, 0 offen sc1',count=False)
                e('s_mov_b64 exec, -1\nLnz:')
            if s%2==1 and (s+3)//2<8: dmaX((s+3)//2)
            if s+3<16: dmaW(s+3)
            if s in(13,14): dmaWo(s-13)
            if s<8:
                for i in range(3): loadK(3*s+i)
            elif s<14:
                for i in range(2): loadV(2*(s-8)+i)
        if F+3<128: rdA(F+3)
        if t>=5 and s<15: rdB(s+1,t-5)
        P.wait(lg=[('A',F)]+([('B',s)] if t==0 else []))
        for u in range(3):
            a=ACC+(t*3+u)*4
            e(f'v_mfma_f32_16x16x32_bf16 {vr(a)}, {vr(AF+(F%4)*4)}, {vr(BF+(s%2)*12+4*u)}, {vr(a) if s else 0}')
e('s_barrier'); stamp('qproj')
QB=lambda s,u: ACC+(2*s*3+u)*4
for s in range(4):
    for u in range(3):
        a=QB(s,u); b=ACC+((2*s+1)*3+u)*4
        e(f'''v_cvt_pk_bf16_f32 v{a}, v{a}, v{a+1}
v_cvt_pk_bf16_f32 v{a+1}, v{a+2}, v{a+3}
v_cvt_pk_bf16_f32 v{a+2}, v{b}, v{b+1}
v_cvt_pk_bf16_f32 v{a+3}, v{b+2}, v{b+3}''')
SR=lambda m,u: BF+(u*3+m)*4
P.wait(vm=['K'])
for s in range(4):
    for u in range(3):
        for m in range(3):
            e(f'v_mfma_f32_16x16x32_bf16 {vr(SR(m,u))}, {vr(KR+(m*4+s)*4)}, {vr(QB(s,u))}, {vr(SR(m,u)) if s else 0}')
stamp('qk')
tA=[228,229,230]; tB=[vK0,vK2,231]
def xlane(op):
    for sw in ('v_permlane32_swap_b32','v_permlane16_swap_b32'):
        for u in range(3): e(f'v_mov_b32 v{tB[u]}, v{tA[u]}')
        for u in range(3): e(f'{sw} v{tA[u]}, v{tB[u]}')
        for u in range(3): e(f'{op} v{tA[u]}, v{tA[u]}, v{tB[u]}')
for k in range(6):
    for u in range(3):
        b=SR(0,u)
        if k==0: e(f'v_max3_f32 v{tA[u]}, v{b}, v{b+1}, v{b+2}')
        elif k<5: e(f'v_max3_f32 v{tA[u]}, v{tA[u]}, v{b+2*k+1}, v{b+2*k+2}')
        else: e(f'v_max_f32 v{tA[u]}, v{tA[u]}, v{b+11}')
xlane('v_max_f32')
for u in range(3): e(f'v_mul_f32 v{tA[u]}, s{sC}, v{tA[u]}')
for u in range(3):
    b=SR(0,u)
    for j in range(12): e(f'v_fma_f32 v{b+j}, v{b+j}, s{sC}, -v{tA[u]}')
    for j in range(12): e(f'v_exp_f32 v{b+j}, v{b+j}')
for k in range(1,12):
    for u in range(3):
        b=SR(0,u)
        e(f'v_add_f32 v{tA[u]}, v{b if k==1 else tA[u]}, v{b+k}')
xlane('v_add_f32')
for u in range(3): e(f'v_rcp_f32 v{tA[u]}, v{tA[u]}')
for u in range(3):
    b=SR(0,u)
    for j in range(12): e(f'v_mul_f32 v{b+j}, v{b+j}, v{tA[u]}')
    for j in range(4): e(f'v_cvt_pk_bf16_f32 v{b+j}, v{b+2*j}, v{b+2*j+1}')
    for j in range(2): e(f'v_cvt_pk_bf16_f32 v{b+8+j}, v{b+8+2*j}, v{b+8+2*j+1}')
stamp('softmax')
P.wait(vm=['V'])
OA=lambda t,u: ACC+(t*3+u)*4
for t in range(8):
    sel=sPHI if t&1 else sPLO
    for r in range(4): e(f'v_perm_b32 v{KR+4*t+r}, v{VR+4*(2*r+1)+(t>>1)}, v{VR+4*(2*r)+(t>>1)}, s{sel}')
    for r in range(2): e(f'v_perm_b32 v{KR+32+2*t+r}, v{VR+32+4*(2*r+1)+(t>>1)}, v{VR+32+4*(2*r)+(t>>1)}, s{sel}')
    if t>0:
        for u in range(3): e(f'v_mfma_f32_16x16x32_bf16 {vr(OA(t-1,u))}, {vr(KR+4*(t-1))}, {vr(SR(0,u))}, 0')
for u in range(3): e(f'v_mfma_f32_16x16x32_bf16 {vr(OA(7,u))}, {vr(KR+28)}, {vr(SR(0,u))}, 0')
for t in range(8):
    for u in range(3): e(f'v_mfma_f32_16x16x16_bf16 {vr(OA(t,u))}, {vr(KR+32+2*t,2)}, {vr(SR(2,u),2)}, {vr(OA(t,u))}')
for u in range(3):
    for j in range(4):
        d=VR+(j*3+u)*4
        for r in range(4): e(f'v_cvt_pk_bf16_f32 v{d+r}, v{OA(2*r,u)+j}, v{OA(2*r+1,u)+j}')
        e(f'ds_write_b128 v{vOW}, {vr(d)} offset:{(j*3+u)*1024}',tag='OW')
e(f'buffer_load_dword v{vT3}, v{vDbg}, {srd(SDBG)}, 0 offen sc1',tag='rdy')
e(f'''s_mul_i32 s{sT0}, s{sBI}, 12288
s_add_u32 s{sT0}, s{sT0}, {OBASE}
v_add_u32 v{aX0}, s{sT0}, v{vL16}
v_add_u32 v{aX1}, 49152, v{aX0}''')
P.wait(vm=[('Wo',0),('Wo',1)],lg0=True); e('s_barrier'); stamp('attn')
OB=lambda kk,u: (kk*3+u)*4
def rdO(kk,u):
    h,j=divmod(kk,4)
    e(f'ds_read_b128 {vr(OB(kk,u))}, v{aX0 if h<2 else aX1} offset:{(h&1)*24576+(j*3+u)*1024}',tag=('O',kk))
def rdA2(G):
    s,i=divmod(G,8); b=AF+(G%4)*4; sl=s%5
    for h in range(2):
        e(f'ds_read_b64_tr_b16 {vr(b+2*h,2)}, v{[aO0,aO0,aO1,aO1,aO2][sl]} offset:{(sl&1)*32768+(128*(i>>2)+8*(i&3)+4*h)*128}',tag=('A2',G))
PS=234
def partbase(dst,dest_s,src):
    e(f'''s_lshl_b32 s{dst}, s{sGRP}, 3
s_add_u32 s{dst}, s{dst}, s{dest_s}
s_lshl_b32 s{dst}, s{dst}, 3
s_add_u32 s{dst}, s{dst}, s{src}
s_lshl_b32 s{dst}, s{dst}, 3
s_add_u32 s{dst}, s{dst}, s{sW}
s_mul_i32 s{dst}, s{dst}, 1536''')
def cntaddr(dest_s,vd):
    e(f'''s_lshl_b32 s{sT1}, s{sGRP}, 3
s_add_u32 s{sT1}, s{sT1}, s{dest_s}
s_lshl_b32 s{sT1}, s{sT1}, 3
s_add_u32 s{sT1}, s{sT1}, s{sW}
s_lshl_b32 s{sT1}, s{sT1}, 4
s_add_u32 s{sT1}, s{sT1}, {CNT}
v_mov_b32 v{vd}, s{sT1}''')
def dest(c): e(f's_add_u32 s{sT2}, s{sHG}, {1+c}\ns_and_b32 s{sT2}, s{sT2}, 7')
def publish(c):
    a=BF+(c%2)*12
    for u in range(3):
        for k in range(2): e(f'v_cvt_pk_bf16_f32 v{PS+2*u+k}, v{a+4*u+2*k}, v{a+4*u+2*k+1}')
    dest(c); partbase(sT1,sT2,sHG)
    e(f'buffer_store_dwordx4 {vr(PS)}, v{vL16}, {srd(SWS)}, s{sT1} offen sc1',tag=('P',c))
    e(f'buffer_store_dwordx2 {vr(PS+4,2)}, v{vL8}, {srd(SWS)}, s{sT1} offen offset:1024 sc1',tag=('P',c))
def signal(c):
    P.wait(vm=[('P',c)])
    if c==0:
        e(f'''s_mov_b32 s{sCH}, {SPIN}
Lrdy:
v_readfirstlane_b32 s{sT0}, v{vT3}
s_and_b32 s{sT0}, s{sT0}, 0x100
s_cbranch_scc1 Lrdy_ok
s_sub_u32 s{sCH}, s{sCH}, 1
s_cbranch_scc1 Lrdy_ok''')
        e(f'buffer_load_dword v{vT3}, v{vDbg}, {srd(SDBG)}, 0 offen sc1',count=False)
        e('s_waitcnt vmcnt(0)\ns_branch Lrdy\nLrdy_ok:')
    dest(c); cntaddr(sT2,vT0)
    e(f'v_mov_b32 v{vT1}, 1\ns_mov_b64 exec, 1')
    e(f'buffer_atomic_add v{vT1}, v{vT0}, {srd(SWS)}, 0 offen sc1',tag='sig')
    e('s_mov_b64 exec, -1')
for kk in range(8):
    for u in range(3): rdO(kk,u)
for G in range(3): rdA2(G)
P.wait(lg=[('O',7)]); e('s_barrier'); dmaWo(2)
for s in range(16):
    c=s//2
    for i in range(8):
        G=8*s+i; kk=(s&1)*8+i
        if i==5:
            if s==0: P.wait(lg=[('O',15)])
            if s<15: P.wait(vm=[('Wo',s+1)])
            e('s_barrier')
            if s==0: dmaWo(3); dmaWo(4)
            elif s+4<16: dmaWo(s+4)
            if s>=3 and s&1: signal((s-3)//2)
        if i==1 and s>=2 and not s&1: publish(c-1)
        if G+3<128: rdA2(G+3)
        if s==0 and i<5:
            o=[(k,u) for k in range(8,16) for u in range(3)]
            for k,u in o[5*i:5*i+5]: rdO(k,u)
        P.wait(lg=[('A2',G)])
        for u in range(3):
            a=BF+(c%2)*12+4*u
            e(f'v_mfma_f32_16x16x32_bf16 {vr(a)}, {vr(AF+(G%4)*4)}, {vr(OB(kk,u))}, {vr(a) if kk else 0}')
stamp('oproj')
cntaddr(sHG,vT0)
e(f's_mov_b32 s{sCH}, {SPIN}\nLpoll:')
e(f'buffer_load_dword v{vT1}, v{vT0}, {srd(SWS)}, 0 offen sc1',count=False)
e(f'''s_waitcnt vmcnt(0)
v_readfirstlane_b32 s{sT0}, v{vT1}
s_cmp_ge_u32 s{sT0}, 7
s_cbranch_scc1 Lpoll_ok
s_sub_u32 s{sCH}, s{sCH}, 1
s_cbranch_scc0 Lpoll
Lpoll_ok:''')
P.vm=[]
stamp('poll')
for i in range(1,8):
    e(f's_add_u32 s{sT2}, s{sHG}, {i}\ns_and_b32 s{sT2}, s{sT2}, 7'); partbase(sT1,sHG,sT2)
    e(f'buffer_load_dwordx4 {vr(8*i)}, v{vL16}, {srd(SWS)}, s{sT1} offen sc1',tag=('R',i))
    e(f'buffer_load_dwordx2 {vr(8*i+4,2)}, v{vL8}, {srd(SWS)}, s{sT1} offen offset:1024 sc1',tag=('R',i))
a=BF+12
for i in range(1,8):
    P.wait(vm=[('R',i)])
    for k in range(6):
        e(f'''v_lshlrev_b32 v{vT0}, 16, v{8*i+k}
v_and_b32 v{vT1}, s{sHI16}, v{8*i+k}
v_add_f32 v{a+2*k}, v{a+2*k}, v{vT0}
v_add_f32 v{a+2*k+1}, v{a+2*k+1}, v{vT1}''')
for u in range(3):
    for k in range(2): e(f'v_cvt_pk_bf16_f32 v{2*u+k}, v{a+4*u+2*k}, v{a+4*u+2*k+1}')
    e(f's_mov_b32 s{sT0}, {u*32768}\nbuffer_store_dwordx2 {vr(2*u,2)}, v{vOut}, {srd(SOUT)}, s{sT0} offen')
if STAMP:
    e('s_waitcnt vmcnt(0)'); stamp('end')
    e(f's_memrealtime s[100:101]\ns_waitcnt lgkmcnt(0)\ns_cmp_lg_u32 s2, {STAMP-1}\ns_cbranch_scc1 Lend\ns_and_b32 s{sT0}, s{sW}, 3\ns_cbranch_scc1 Lend')
    e(f's_lshl_b32 s{sT1}, s{sW}, 4\ns_add_u32 s{sT1}, s{sT1}, 128\nv_mov_b32 v1, s{sT1}')
    for i in range(1,len(stamps)+1):
        e((f's_sub_u32 s{sT0}, s{sST+2*i}, s{sST}' if i<len(stamps) else f's_sub_u32 s{sT0}, s100, s98')+f'\nv_mov_b32 v2, s{sT0}\nbuffer_store_dword v2, v1, {srd(SDBG)}, 0 offen offset:{4*(i-1)}')
    print('stamps:',stamps[1:]+['realtime10ns'])
e('s_waitcnt vmcnt(0)\nLend:')
src=open(f"cdna_kernels/{N}.s.ref").read()
head=src[:src.index("; @launch")]; tail=src[src.index("s_endpgm"):]
out=head+"; @launch grid=(256,1,1) block=(512,1,1) lds=163840\n"
out+=f'.amdgcn_target "amdgcn-amd-amdhsa--gfx950"\n.text\n.globl {N}_kernel\n.p2align 8\n.type {N}_kernel,@function\n{N}_kernel:\n'
open(sys.argv[1],'w').write(out+P.text()+tail)
print('instrs',len(P.ins),'nops',sum(1 for i in P.ins if i.op=='s_nop'))
```
